```python
import torch

def _softmax(x, axis=-1):
    return torch.softmax(x, dim=axis)
def _gelu(x):
    return torch.nn.functional.gelu(x, approximate="tanh")
def _silu(x):
    return torch.nn.functional.silu(x)
def _sigmoid(x):
    return torch.sigmoid(x)
def _layernorm(x, axis=-1, eps=1e-5):
    m = x.mean(dim=axis, keepdim=True)
    v = x.var(dim=axis, keepdim=True, unbiased=False)
    return (x - m) / torch.sqrt(v + eps)
def _scatter_add(tgt, idx, src, axis=0):
    return tgt.clone().index_add_(axis, idx, src)
def _segment_sum(src, seg, n):
    out = torch.zeros((n,) + src.shape[1:], dtype=src.dtype)
    return out.index_add_(0, seg, src)
def _pad(x, pw):
    flat = tuple(v for pair in reversed(pw) for v in pair)
    return torch.nn.functional.pad(x, flat)

kernel_name = 'recurrent_scan__sliding_block_cached__glu_gated_glu__prompt'

def setup_inputs():

    _w = (lambda a: (lambda t: t.to(torch.bfloat16) if t.is_floating_point() else t)(torch.as_tensor(a)))
    def _A_setup():
        B, Sq, D = 1, 2048, 512
        Hq, Hkv, Sk, Dh = 32, 32, 2048, 128
        assert Hq % Hkv == 0, (Hq, Hkv)
        return {
            "x": _w((lambda *s: torch.randn(*s, dtype=torch.bfloat16) * 0.05)(B, Sq, D)),
            "k_cache": _w((lambda *s: torch.randn(*s, dtype=torch.bfloat16) * 0.8)(B, Hkv, Sk, Dh)),
            "v_cache": _w((lambda *s: torch.randn(*s, dtype=torch.bfloat16) * 0.2)(B, Hkv, Sk, Dh)),
            "wq": _w((lambda *s: torch.randn(*s, dtype=torch.bfloat16) * 0.8)(D, Hq * Dh) * (D ** -0.5)),
            "wo": _w((lambda *s: torch.randn(*s, dtype=torch.bfloat16) * 0.2)(Hq * Dh, D) * ((Hq * Dh) ** -0.5)),
        }
    _A_in = _A_setup()

    def _B_setup():
        B, S, D, F = 1, 2048, 512, 1376
        return {
            "x": _w((lambda *s: torch.randn(*s, dtype=torch.bfloat16) * 0.05)(B, S, D)),
            "w_gate": _w((lambda *s: torch.randn(*s, dtype=torch.bfloat16) * 0.2)(D, F)),
            "w_up": _w((lambda *s: torch.randn(*s, dtype=torch.bfloat16) * 0.1)(D, F)),
            "w_down": _w((lambda *s: torch.randn(*s, dtype=torch.bfloat16) * 0.1)(F, D)),
        }
    _B_in = _B_setup()

    return {
        "A_x": _A_in["x"],
        "A_k_cache": _A_in["k_cache"],
        "A_v_cache": _A_in["v_cache"],
        "A_wq": _A_in["wq"],
        "A_wo": _A_in["wo"],
        "B_x": _B_in["x"],
        "B_w_gate": _B_in["w_gate"],
        "B_w_up": _B_in["w_up"],
        "B_w_down": _B_in["w_down"],
    }

def reference(A_x, A_k_cache, A_v_cache, A_wq, A_wo, B_x, B_w_gate, B_w_up, B_w_down):
    def _A_ref(x, k_cache, v_cache, wq, wo):
        B, Sq, D = x.shape
        Hq, Dh = 32, 128
        Hkv, Sk = k_cache.shape[1], k_cache.shape[2]
        W = min(4096, max(256, Sk // 4))
        rep = Hq // Hkv
        q = (lambda x, *d: x.permute(*d))((x @ wq).reshape(B, Sq, Hq, Dh), 0, 2, 1, 3)
        k = (lambda x, n, axis: torch.repeat_interleave(x, n, dim=axis))(k_cache[:, :, Sk - W:, :], rep, axis=1)
        v = (lambda x, n, axis: torch.repeat_interleave(x, n, dim=axis))(v_cache[:, :, Sk - W:, :], rep, axis=1)
        scores = torch.einsum("bhqd,bhkd->bhqk", q, k) * (Dh ** -0.5)
        p = _softmax(scores, axis=-1)
        o = torch.einsum("bhqk,bhkd->bhqd", p, v)
        return (lambda x, *d: x.permute(*d))(o, 0, 2, 1, 3).reshape(B, Sq, Hq * Dh) @ wo

    def _B_ref(x, w_gate, w_up, w_down):
        g = torch.einsum("bsd,df->bsf", x, w_gate)
        u = torch.einsum("bsd,df->bsf", x, w_up)
        h = _sigmoid(g) * u
        return torch.einsum("bsf,fd->bsd", h, w_down)

    x = A_x
    xn = _layernorm(x, axis=-1)
    s = _A_ref(xn, A_k_cache, A_v_cache, A_wq, A_wo)
    g = _silu(_B_ref(xn, B_w_gate, B_w_up, B_w_down))
    return x + s * g
```

```python
import re

def vr(b, n=1):
    return f"v{b}" if n == 1 else f"v[{b}:{b+n-1}]"
def ar(b, n=1):
    return f"a{b}" if n == 1 else f"a[{b}:{b+n-1}]"
def sr(b, n=1):
    return f"s{b}" if n == 1 else f"s[{b}:{b+n-1}]"

class R:
    def __init__(self, kind, base, n=1):
        self.kind, self.base, self.n = kind, base, n
    def __str__(self):
        return (vr if self.kind == 'v' else ar)(self.base, self.n)
    def regs(self):
        return [(self.kind, self.base + i) for i in range(self.n)]
    def sub(self, off, n=1):
        assert off + n <= self.n
        return R(self.kind, self.base + off, n)
    def __getitem__(self, i):
        return self.sub(i, 1)

def V(b, n=1): return R('v', b, n)
def AG(b, n=1): return R('a', b, n)

def _regs(lst):
    out = []
    for x in lst:
        if isinstance(x, R): out += x.regs()
        elif isinstance(x, tuple): out.append(x)
        elif isinstance(x, str): out.append(('s', x))
    return out

TRANS = ("v_exp_f32", "v_rcp_f32", "v_rsq_f32", "v_log_f32", "v_sqrt_f32")

class Ins:
    def __init__(self, text, kind, rd=(), wr=(), srcc=(), cost=1, passes=0):
        self.text, self.kind = text, kind
        self.rd, self.wr, self.srcc = _regs(rd), _regs(wr), _regs(srcc)
        self.cost = cost
        self.passes = passes
    def op(self):
        return self.text.split()[0]

class Prog:
    def __init__(self):
        self.ins = []
        self.lds_issued = 0
        self.lds_done = 0
        self.pending = {}
        self.auto = True
    def raw(self, text, kind="salu", rd=(), wr=(), **kw):
        i = Ins(text, kind, rd, wr, **kw)
        self._need(i)
        self.ins.append(i)
        return i
    def label(self, name):
        self.ins.append(Ins(name + ":", "label"))
    def comment(self, t):
        self.ins.append(Ins("; " + t, "label"))
    def directive(self, t):
        self.ins.append(Ins(t, "label"))
    def wait_lds_seq(self, seq):
        if seq < self.lds_done: return
        n = self.lds_issued - seq - 1
        n = min(n, 15)
        self.ins.append(Ins(f"s_waitcnt lgkmcnt({n})", "wait"))
        self.lds_done = max(self.lds_done, self.lds_issued - n)
    def wait_lds_all(self):
        if self.lds_done < self.lds_issued:
            self.wait_lds_seq(self.lds_issued - 1)
    def _need(self, i):
        if not self.auto: return
        m = -1
        for r in i.rd + i.wr + i.srcc:
            if r in self.pending:
                m = max(m, self.pending[r])
        if m >= 0: self.wait_lds_seq(m)
    def lds(self, text, rd=(), wr=()):
        i = Ins(text, "lds", rd, wr)
        self._need(i)
        self.ins.append(i)
        seq = self.lds_issued
        self.lds_issued += 1
        for r in i.wr: self.pending[r] = seq
        return seq
    def valu(self, op, dst, *srcs, extra="", rdx=(), wrx=()):
        ops = [str(dst)] + [str(s) for s in srcs]
        rd = [s for s in srcs if isinstance(s, R)] + list(rdx)
        for s in srcs:
            if isinstance(s, str) and re.match(r"^-?(s\d+|vcc|s\[)", s):
                rd.append(s.lstrip('-'))
        base = op.replace("_e32", "").replace("_e64", "")
        if base in ("v_fmac_f32", "v_dot2c_f32_bf16", "v_pk_fmac_f32"): rd.append(dst)
        cost = 2 if base in TRANS else 1
        wr = [dst] if isinstance(dst, R) else [dst]
        return self.raw(f"{op} {', '.join(ops)}{extra}", "valu", rd, list(wr) + list(wrx), cost=cost)
    def mfma(self, d, a, b, c, shape="32x32x16"):
        passes = 8 if shape == "32x32x16" else 4
        cs = str(c)
        return self.raw(f"v_mfma_f32_{shape}_bf16 {d}, {a}, {b}, {cs}", "mfma", [a, b], [d],
                        srcc=[c] if isinstance(c, R) else [], passes=passes)
    def salu(self, text, rd=(), wr=()):
        return self.raw(text, "salu", rd, wr)
    def nop(self, n):
        self.ins.append(Ins(f"s_nop {n}", "nop", cost=n + 1))
    def text(self):
        out = []
        for i in self.ins:
            if i.kind == "label": out.append(i.text)
            else: out.append("    " + i.text)
        return "\n".join(out) + "\n"


def check_hazards(ins, name=""):
    probs = []
    seq = [i for i in ins if i.kind != "label"]
    pos = []
    p = 0
    for i in seq:
        pos.append(p)
        p += (i.cost if i.kind == "nop" else 1)
    last_valu_wr = {}
    last_trans_wr = {}
    last_mfma_wr = {}
    last_mfma_srcc = {}
    last_store_data = {}
    last_dot_wr = {}
    last_salu_m0 = None
    last_valu_sgpr = {}
    def dist(a, b):
        return pos[b] - pos[a] - (seq[a].cost if seq[a].kind == "nop" else 1)
    for k, i in enumerate(seq):
        op = i.op()
        def need(prod, n, why):
            if prod is not None and dist(prod, k) < n:
                probs.append(f"{name}: {why}: need {n} have {dist(prod,k)}: [{seq[prod].text}] -> [{i.text}]")
        if i.kind == "mfma":
            for r in i.rd + i.srcc:
                need(last_valu_wr.get(r), 2, "valu->mfma")
            for r in i.rd:
                if r in last_mfma_wr:
                    pr = last_mfma_wr[r]
                    need(pr, 12 if seq[pr].passes == 8 else 8, "mfma D->mfma AB")
            for r in i.srcc:
                if r in last_mfma_wr:
                    pr = last_mfma_wr[r]
                    same = (seq[pr].wr == i.srcc and seq[pr].passes == i.passes)
                    if not same:
                        need(pr, 10 if seq[pr].passes == 8 else 6, "mfma D->mfma C overlap")
            for r in i.wr:
                if r in last_mfma_wr and r not in i.srcc:
                    pr = last_mfma_wr[r]
                    need(pr, 10 if seq[pr].passes == 8 else 6, "mfma D->mfma D waw")
        if i.kind in ("valu", "lds", "vmem"):
            for r in i.rd + (i.wr if i.kind in ("valu", "lds", "vmem") else []):
                if r in last_mfma_wr:
                    pr = last_mfma_wr[r]
                    need(pr, 12 if seq[pr].passes == 8 else 8, "mfma D->valu/mem")
        if i.kind == "valu":
            base = op.replace("_e32", "").replace("_e64", "")
            if base not in TRANS:
                for r in i.rd:
                    need(last_trans_wr.get(r), 1, "trans->valu")
            for r in i.wr:
                if r in last_mfma_srcc:
                    pr = last_mfma_srcc[r]
                    need(pr, 7 if seq[pr].passes == 8 else 3, "mfma C read->valu write")
                need(last_store_data.get(r), 2, "store data WAR")
            if op.startswith("v_permlane"):
                for r in i.rd + i.wr:
                    need(last_valu_wr.get(r), 2, "valu->permlane")
            if op.startswith("v_readfirstlane") or op.startswith("v_readlane"):
                for r in i.rd:
                    need(last_valu_wr.get(r), 1, "valu->readlane")
            if "dpp" in i.text:
                for r in i.rd:
                    need(last_valu_wr.get(r), 2, "valu->dpp")
            for r in i.rd:
                if r[0] == 's':
                    need(last_valu_sgpr.get(r), 2, "valu sgpr->valu")
            for r in i.rd + i.wr:
                if r in last_dot_wr and not base.startswith("v_dot2c"):
                    need(last_dot_wr[r], 3, "dot->other")
        if i.kind in ("vmem", "lds"):
            for r in i.rd:
                need(last_trans_wr.get(r), 1, "trans->mem")
                if r[0] == 's':
                    need(last_valu_sgpr.get(r), 5, "valu sgpr->vmem")
            if i.kind == "vmem" and " lds" in i.text:
                need(last_salu_m0, 1, "m0->dma")
        if i.kind == "lds" or i.kind == "vmem":
            for r in i.wr:
                need(last_store_data.get(r), 1, "store data WAR(load)")
        if i.kind == "valu":
            base = op.replace("_e32", "").replace("_e64", "")
            for r in i.wr:
                if r[0] == 's':
                    last_valu_sgpr[r] = k
                else:
                    last_valu_wr[r] = k
                    last_mfma_wr.pop(r, None)
                    if base in TRANS: last_trans_wr[r] = k
                    else: last_trans_wr.pop(r, None)
                    if base.startswith("v_dot2"): last_dot_wr[r] = k
                    else: last_dot_wr.pop(r, None)
        if i.kind == "mfma":
            for r in i.wr:
                last_mfma_wr[r] = k
                last_valu_wr.pop(r, None)
            for r in i.srcc: last_mfma_srcc[r] = k
        if i.kind == "salu" and ('s', 'm0') in i.wr:
            last_salu_m0 = k
        if i.kind == "vmem" and "store" in op and ("x4" in op or "x3" in op):
            for r in i.rd:
                if r[0] != 's': last_store_data[r] = k
    return probs


KN = "recurrent_scan__sliding_block_cached__glu_gated_glu__prompt"

def kernel_text(name, body, vgpr, sgpr, accum):
    return f""".text
.globl {name}
.p2align 8
.type {name},@function
{name}:
{body}
.section .rodata,"a"
.p2align 6
.amdhsa_kernel {name}
  .amdhsa_next_free_vgpr {vgpr}
  .amdhsa_next_free_sgpr {sgpr}
  .amdhsa_accum_offset {accum}
  .amdhsa_group_segment_fixed_size 0
  .amdhsa_kernarg_size 96
  .amdhsa_user_sgpr_count 2
  .amdhsa_user_sgpr_kernarg_segment_ptr 1
  .amdhsa_system_sgpr_workgroup_id_x 1
.end_amdhsa_kernel
"""

def file_text(launches, kernels, header=""):
    h = header
    for (n, g, b, lds) in launches:
        h += f"; @launch kernel={n} grid=({g},1,1) block=({b},1,1) lds={lds}\n"
    h += '.amdgcn_target "amdgcn-amd-amdhsa--gfx950"\n'
    return h + "".join(kernels)
```

```python
from fw import *

OF_OFF = 0
HF_OFF = 16 << 20
EX_OFF = 24 << 20
WS_BYTES = 32 << 20

UNIT = 16384
WBASE = 65536
MISC = 9 * UNIT
CS_PART = MISC
CS_FIN = MISC + 4096
FLAG = MISC + 8192
KU = [8, 0, 4, 2, 6, 8, 1, 5]
VU = [1, 5, 3, 7, 0, 4, 2, 6]
LOG2E = 1.4426950408889634
QSCALE = LOG2E / (128 ** 0.5)

import struct
def f2u(f): return struct.unpack("<I", struct.pack("<f", f))[0]

LANE = V(0)
T1, T2, T3 = V(1), V(2), V(3)
KRD = [V(4 + i) for i in range(8)]
VRD = [V(12 + i) for i in range(4)]
KDMA = [V(16 + i) for i in range(4)]
VDMA = V(20)
L = [V(21), V(22)]
NMR = [V(23), V(24)]
RSTD = [V(25), V(26)]
MINIT = [V(27), V(28)]
T4, T5, T6 = V(29), V(30), V(31)
XRD = [V(32 + i) for i in range(4)]
WRD = [V(36 + i) for i in range(4)]
GURD = V(40)
MASK = V(44, 4)
SUM = [V(48), V(49)]
SQ = [V(50), V(51)]
ST = [V(52 + i) for i in range(4)]
def XF(ks, g): return V(64 + (ks * 2 + g) * 4, 4)
XDMA = [V(96 + i) for i in range(8)]
WDMA = [V(104 + i) for i in range(4)]
GUDMA = [V(108 + i) for i in range(3)]
def QA(g, t): return V(128 + (g * 4 + t) * 16, 16)
def GUA(g, t): return AG((g * 3 + t) * 16, 16)
def AF(n): return AG(96 + (n % 14) * 4, 4)
def CSA(t): return AG(224 + t * 4, 4)
def QF(g, s): return V(64 + (g * 8 + s) * 4, 4)
def VF(p): return V(32 + p * 4, 4)
def KF(s): return AG(224 + s * 4, 4)
def S(b, g): return V(128 + (b * 2 + g) * 16, 16)
def P(b, g, kk): return V(192 + (b * 4 + g * 2 + kk) * 4, 4)
def NEGM(g): return V(224 + g * 16, 16)
def OA(g, dt): return AG(96 + (g * 4 + dt) * 16, 16)

sX, sWQ, sGU, sK, sV, sWS = 8, 12, 16, 20, 24, 28
sWAVE, sH, sRB = 32, 33, 34
sXOFF, sWOFF, sGUOFF, sIT = 35, 36, 37, 38
sXM0, sWCUR, sGUL, sW4K = 39, 40, 41, 42
sKVB = 43
sHI = 44
sWDST = 45
sD = 46; sT0, sT1, sT2, sT3 = 47, 48, 49, 50
sKT, sVT, sKD, sVD, sKC, sVC = 51, 52, 53, 54, 55, 56
sREDO = 57
sKSRC, sVSRC = 58, 59
sC0, sC1 = 60, 61


class Gap:
    def __init__(self):
        self.first = []
        self.mid = []
        self.valu = []


def sched(p, mfmas, pinned, flex, budget=6):
    fi = 0
    n = len(mfmas)
    for k in range(n):
        mfmas[k]()
        used = 0
        for (c, th) in pinned.get(k, []):
            th(); used += c
        while fi < len(flex):
            e, l, c, th = flex[fi]
            if e > k: break
            if used + c > budget and l > k: break
            th(); used += c; fi += 1
    while fi < len(flex):
        flex[fi][3](); fi += 1


def dma(p, voff, srd, soff, off=0):
    o = f" offset:{off}" if off else ""
    p.raw(f"buffer_load_dwordx4 {voff}, {sr(srd,4)}, {soff} offen{o} lds", "vmem", [voff, 'm0'])


def gen_k1(debug=False):
    p = Prog()
    A = p.salu
    nst = [0]
    def stamp():
        if not debug: return
        i = nst[0]; nst[0] += 1
        p.wait_lds_all()
        A(f"s_memtime s[{80+2*i}:{81+2*i}]")
        A("s_waitcnt lgkmcnt(0)")
    A("s_cmp_ge_u32 s2, 256")
    A("s_cbranch_scc1 K1_END")
    stamp()
    if debug: A("s_memrealtime s[78:79]")
    A("s_load_dwordx4 s[64:67], s[0:1], 0")
    A("s_load_dwordx4 s[68:71], s[0:1], 16")
    A("s_load_dwordx4 s[72:75], s[0:1], 48")
    A("s_load_dwordx2 s[76:77], s[0:1], 88")
    p.valu("v_lshrrev_b32", T1, 6, LANE)
    p.valu("v_and_b32", LANE, 63, LANE)
    A("s_and_b32 s3, s2, 7")
    A("s_lshr_b32 s4, s2, 3")
    p.valu("v_readfirstlane_b32", f"s{sWAVE}", T1)
    A("s_and_b32 s5, s4, 3")
    A("s_lshl_b32 s3, s3, 2")
    A(f"s_add_u32 s{sH}, s3, s5")
    A(f"s_lshr_b32 s{sRB}, s4, 2")
    A(f"s_mov_b32 s{sHI}, 0xffff0000")
    l = LANE
    p.valu("v_lshrrev_b32", T1, 3, l)
    p.valu("v_lshlrev_b32", T1, 10, T1)
    p.valu("v_lshrrev_b32", T2, 4, l)
    p.valu("v_and_b32", T3, 7, l)
    p.valu("v_xor_b32", T4, T3, T2)
    p.valu("v_xor_b32", T5, 4, T4)
    p.valu("v_lshl_add_u32", T4, T4, 4, T1)
    p.valu("v_lshl_add_u32", T5, T5, 4, T1)
    for j in range(8):
        p.valu("v_add_u32", XDMA[j], j * 8192 - (j % 4) * 1024, T4 if j % 2 == 0 else T5)
    p.valu("v_and_b32", T3, 15, l)
    p.valu("v_lshlrev_b32", T4, 2, T2)
    p.valu("v_xor_b32", T4, T4, T3)
    p.valu("v_lshlrev_b32", T4, 4, T4)
    p.valu("v_lshl_add_u32", VDMA, T2, 8, T4)
    p.valu("v_lshl_add_u32", T4, T2, 13, T4)
    for j in range(4):
        p.valu("v_add_u32", WDMA[j], j * 4 * 8192 - j * 1024, T4)
    for q in range(4):
        p.valu("v_xor_b32", T4, T3, T2)
        p.valu("v_xor_b32", T4, 4 * q, T4)
        p.valu("v_lshlrev_b32", T4, 4, T4)
        p.valu("v_lshl_add_u32", KDMA[q], T2, 8, T4)
    A("s_mov_b32 s5, 43691")
    A("s_mov_b32 s6, 2752")
    for j in range(3):
        p.valu("v_add_u32", T4, j * 64, l)
        p.valu("v_mul_lo_u32", T5, T4, "s5")
        p.valu("v_lshrrev_b32", T5, 18, T5)
        p.valu("v_mul_u32_u24", T6, 6, T5)
        p.valu("v_sub_u32", T4, T4, T6)
        p.valu("v_mul_lo_u32", T5, T5, "s6")
        p.valu("v_lshl_add_u32", T4, T4, 4, T5)
        p.valu("v_subrev_u32", GUDMA[j], j * 1024, T4)
    A("s_waitcnt lgkmcnt(0)")
    def srd(d, lo, nbytes):
        A(f"s_mov_b32 s{d}, s{lo}")
        A(f"s_mov_b32 s{d+1}, s{lo+1}")
        A(f"s_mov_b32 s{d+2}, {nbytes}")
        A(f"s_mov_b32 s{d+3}, 0x00020000")
    srd(sX, 64, 2048 * 1024)
    srd(sWQ, 70, 512 * 8192)
    A(f"s_cmp_lt_u32 s{sWAVE}, 2")
    A(f"s_cselect_b32 s{sGU}, s72, s74")
    A(f"s_cselect_b32 s{sGU+1}, s73, s75")
    A(f"s_mov_b32 s{sGU+2}, {512*2752}")
    A(f"s_mov_b32 s{sGU+3}, 0x00020000")
    A(f"s_lshl_b32 s{sW4K}, s{sWAVE}, 12")
    A(f"s_lshl_b32 s{sXOFF}, s{sRB}, 18")
    A(f"s_lshl_b32 s3, s{sWAVE}, 16")
    A(f"s_add_u32 s{sXOFF}, s{sXOFF}, s3")
    A(f"s_lshl_b32 s{sWOFF}, s{sWAVE}, 17")
    A(f"s_lshl_b32 s3, s{sH}, 8")
    A(f"s_add_u32 s{sWOFF}, s{sWOFF}, s3")
    A(f"s_and_b32 s3, s{sWAVE}, 1")
    A(f"s_mul_i32 s{sGUOFF}, s3, {32*2752}")
    A(f"s_mul_i32 s4, s{sH}, 96")
    A(f"s_add_u32 s{sGUOFF}, s{sGUOFF}, s4")
    A(f"s_mul_i32 s{sGUL}, s3, 3072")
    A(f"s_lshr_b32 s3, s{sWAVE}, 1")
    A(f"s_mul_i32 s3, s3, 6272")
    A(f"s_add_u32 s{sGUL}, s{sGUL}, s3")
    A(f"s_add_u32 s{sGUL}, s{sGUL}, 16384")
    A(f"s_lshl_b32 s{sXM0}, s{sWAVE}, 13")

    def dma_w_items():
        it = []
        def m0a(): A(f"s_add_u32 m0, s{sWDST}, s{sW4K}", wr=['m0'])
        def m0b(): A(f"s_add_u32 m0, s{sWDST}, s{sGUL}", wr=['m0'])
        it.append([m0a] + [(lambda j=j: dma(p, WDMA[j], sWQ, f"s{sWOFF}", j * 1024)) for j in range(4)])
        it.append([m0b] + [(lambda j=j: dma(p, GUDMA[j], sGU, f"s{sGUOFF}", j * 1024)) for j in range(3)])
        return it
    def dma_x_items():
        it = []
        def m0a(): A(f"s_mov_b32 m0, s{sXM0}", wr=['m0'])
        def m0b(): A(f"s_add_u32 m0, s{sXM0}, 4096", wr=['m0'])
        it.append([m0a] + [(lambda j=j: dma(p, XDMA[j], sX, f"s{sXOFF}", (j % 4) * 1024)) for j in range(4)])
        it.append([m0b] + [(lambda j=j: dma(p, XDMA[j], sX, f"s{sXOFF}", (j % 4) * 1024)) for j in range(4, 8)])
        return it
    def adv_w():
        A(f"s_add_u32 s{sWOFF}, s{sWOFF}, {64*8192}")
        A(f"s_add_u32 s{sGUOFF}, s{sGUOFF}, {64*2752}")
    def adv_x():
        A(f"s_add_u32 s{sXOFF}, s{sXOFF}, 128")
        A(f"s_xor_b32 s{sXM0}, s{sXM0}, 32768")
    def run_group(g):
        g[0](); p.nop(0)
        for th in g[1:]: th()
    A(f"s_mov_b32 s{sWDST}, {WBASE}")
    for st in range(2):
        for g in dma_w_items(): run_group(g)
        adv_w()
        for g in dma_x_items(): run_group(g)
        adv_x()
        A(f"s_add_u32 s{sWDST}, s{sWDST}, 32768")
    srd(sK, 66, 32 * 524288)
    srd(sV, 68, 32 * 524288)
    srd(sWS, 76, WS_BYTES)
    A(f"s_lshl_b32 s{sKVB}, s{sH}, 19")
    A(f"s_add_u32 s{sKVB}, s{sKVB}, {1536*256}")
    A(f"s_add_u32 s{sKVB}, s{sKVB}, s{sW4K}")
    A(f"s_mov_b32 s{sREDO}, 0")
    j31, hf, G, tt = T1, T2, T3, T4
    p.valu("v_and_b32", j31, 31, l)
    p.valu("v_lshrrev_b32", hf, 5, l)
    p.valu("v_bfe_u32", T5, l, 1, 3)
    p.valu("v_xor_b32", T5, T5, hf)
    p.valu("v_lshlrev_b32", T6, 7, j31)
    p.valu("v_add_u32", T6, f"s{sXM0}", T6)
    for ks in range(4):
        p.valu("v_xor_b32", XRD[ks], 2 * ks, T5)
        p.valu("v_lshl_add_u32", XRD[ks], XRD[ks], 4, T6)
    p.valu("v_and_b32", T5, 15, l)
    p.valu("v_xor_b32", T5, T5, hf)
    p.valu("v_lshlrev_b32", T6, 8, j31)
    p.valu("v_add_u32", T6, KU[0] * UNIT, T6)
    for s in range(8):
        p.valu("v_xor_b32", KRD[s], 2 * s, T5)
        p.valu("v_lshl_add_u32", KRD[s], KRD[s], 4, T6)
    p.valu("v_bfe_u32", T3, l, 2, 2)
    p.valu("v_and_b32", T4, 3, l)
    p.valu("v_bfe_u32", T5, l, 4, 1)
    p.valu("v_lshl_add_u32", T6, hf, 2, T3)
    p.valu("v_lshlrev_b32", T6, 8, T6)
    p.valu("v_lshl_add_u32", T6, T5, 5, T6)
    p.valu("v_lshl_add_u32", T6, T4, 3, T6)
    p.valu("v_add_u32", T6, VU[0] * UNIT, T6)
    for dt in range(4):
        p.valu("v_xor_b32", VRD[dt], dt, T3)
        p.valu("v_lshl_add_u32", VRD[dt], VRD[dt], 6, T6)
    p.valu("v_lshl_add_u32", T6, hf, 3, T3)
    p.valu("v_mul_u32_u24", GURD, 96, T6)
    p.valu("v_mul_u32_u24", T1, 6272, T5)
    p.valu("v_add_u32", GURD, GURD, T1)
    p.valu("v_lshl_add_u32", GURD, T4, 3, GURD)
    p.valu("v_add_u32", GURD, WBASE + 16384, GURD)
    p.valu("v_lshlrev_b32", T6, 8, T6)
    p.valu("v_lshl_add_u32", T6, T5, 5, T6)
    p.valu("v_and_b32", T1, 1, l)
    p.valu("v_bfe_u32", T2, l, 1, 1)
    p.valu("v_lshl_add_u32", T1, T1, 1, T2)
    p.valu("v_lshl_add_u32", T6, T1, 3, T6)
    p.valu("v_add_u32", T6, WBASE, T6)
    for t in range(4):
        p.valu("v_xor_b32", WRD[t], t, T3)
        p.valu("v_lshl_add_u32", WRD[t], WRD[t], 6, T6)
    p.valu("v_and_b32", T1, 15, l)
    p.valu("v_cmp_eq_u32", "vcc", T1, T5)
    p.valu("v_mov_b32", T2, 0x3f803f80)
    p.nop(1)
    for i in range(4):
        p.valu("v_cndmask_b32", MASK[i], 0, T2, "vcc")
    for g in range(2):
        p.valu("v_mov_b32", SUM[g], 0); p.valu("v_mov_b32", SQ[g], 0); p.valu("v_mov_b32", L[g], 0)
        p.valu("v_mov_b32", MINIT[g], 0xff800000)
    for r in range(128, 256): p.valu("v_mov_b32", V(r), 0)
    for r in list(range(0, 96)) + list(range(152, 252)): p.valu("v_accvgpr_write_b32", AG(r), 0)
    A(f"s_mov_b32 s{sWCUR}, 0")
    A(f"s_mov_b32 s{sIT}, 0")

    def rd_A(n, r):
        n %= 28
        ks, t = n // 7, n % 7
        d = AF(n).sub(2 * r, 2)
        if t < 4:
            return p.lds(f"ds_read_b64_tr_b16 {d}, {WRD[t]} offset:{ks*4096 + r*1024}", [WRD[t]], [d])
        return p.lds(f"ds_read_b64_tr_b16 {d}, {GURD} offset:{ks*1536 + r*384 + (t-4)*32}", [GURD], [d])
    def rd_X(ks, g):
        s = p.lds(f"ds_read_b128 {XF(ks,g)}, {XRD[ks]} offset:{g*4096}", [XRD[ks]], [XF(ks, g)])
        return s
    def tog_X(ks):
        p.valu("v_xor_b32", XRD[ks], 0x8000, XRD[ks])

    stamp()
    p.raw("s_waitcnt vmcnt(15)", "wait")
    p.raw("s_barrier", "salu")
    stamp()
    TAIL_X = {42: [(0, 0)], 43: [(0, 1)], 46: [(1, 0), (1, 1)], 47: [(2, 0), (2, 1)]}
    TAIL_A = {48: [(0, 0), (0, 1)], 49: [(1, 0), (1, 1)], 50: [(2, 0)], 51: [(2, 1)], 52: [(3, 0)], 53: [(3, 1)], 54: [(4, 0)], 55: [(4, 1)]}
    for k in sorted(TAIL_X):
        for (ks, g) in TAIL_X[k]:
            rd_X(ks, g)
            if g == 1: tog_X(ks)
    for k in sorted(TAIL_A):
        for (n, r) in TAIL_A[k]: rd_A(n, r)

    lblc = [0]
    def p1_body():
        mf = []
        for m in range(56):
            ks, t, g = m // 14, (m % 14) // 2, m % 2
            n = ks * 7 + t
            acc = QA(g, t) if t < 4 else GUA(g, t - 4)
            mf.append(lambda acc=acc, n=n, ks=ks, g=g: p.mfma(acc, AF(n), XF(ks, g), acc))
        pin = {}
        def add(k, c, th): pin.setdefault(k, []).append((c, th))
        st = {}
        for n in range(5, 28):
            for r in range(2):
                def th(n=n, r=r):
                    s = rd_A(n, r)
                    if n == 27 and r == 1: st['lastA'] = s
                add(2 * n - 10 + r, 1, th)
        add(0, 1, lambda: rd_X(3, 0))
        def th():
            st['x3'] = rd_X(3, 1); tog_X(3)
        add(1, 2, th)
        def flags():
            A(f"s_cmp_lt_u32 s{sIT}, 6")
            A("s_cselect_b64 vcc, -1, 0", wr=['vcc'])
        add(0, 2, flags)
        def special():
            A("s_cbranch_vccz K1_P1_SPECIAL")
            p.label("K1_P1_SPECIAL_RET")
        add(2, 1, special)
        groups = dma_w_items() + dma_x_items()
        gp = [4, 8, 12, 16]
        for gi, grp in enumerate(groups):
            def th(grp=grp, gi=gi):
                lblc[0] += 1
                lb = f"K1_SK{gi}"
                if gi == 2: p.wait_lds_seq(st['x3'])
                A(f"s_cbranch_vccz {lb}")
                grp[0](); p.nop(0)
                for t_ in grp[1:]: t_()
                p.label(lb)
            add(gp[gi], len(grp) + 1, th)
        def adv():
            adv_w(); adv_x()
        add(20, 4, adv)
        for ks in range(4):
            def th(ks=ks):
                A(f"s_cmp_eq_u32 s{sWAVE}, {ks}")
                A(f"s_cbranch_scc0 K1_CS{ks}")
                for t in range(7):
                    p.mfma(CSA(t), AF(ks * 7 + t), MASK, CSA(t), shape="16x16x32")
                p.label(f"K1_CS{ks}")
            add(14 * ks + 13, 2, th)
        def vw():
            p.raw("s_waitcnt vmcnt(15)", "wait")
            A(f"s_cmp_eq_u32 s{sIT}, 6")
            A("s_cbranch_scc0 K1_VW")
            p.raw("s_waitcnt vmcnt(4)", "wait")
            p.label("K1_VW")
        add(41, 3, vw)
        for k in TAIL_X:
            for (ks, g) in TAIL_X[k]:
                def th(ks=ks, g=g):
                    rd_X(ks, g)
                    if g == 1: tog_X(ks)
                add(k, 1 + g, th)
        def wptr():
            A(f"s_lshl_b32 s{sWDST}, s{sWCUR}, 15")
            A(f"s_add_u32 s{sWDST}, s{sWDST}, {WBASE}")
            A(f"s_add_u32 s{sWCUR}, s{sWCUR}, 1")
            A(f"s_cmp_eq_u32 s{sWCUR}, 3")
            A(f"s_cselect_b32 s{sD}, s{sHI}, 32768")
            A(f"s_cselect_b32 s{sWCUR}, 0, s{sWCUR}")
        add(30, 6, wptr)
        def wadd():
            for t in range(4): p.valu("v_add_u32", WRD[t], f"s{sD}", WRD[t])
            p.valu("v_add_u32", GURD, f"s{sD}", GURD)
        add(45, 5, wadd)
        def bar():
            p.wait_lds_seq(st['lastA'])
            p.raw("s_barrier", "salu")
        add(48, 2, bar)
        for k in TAIL_A:
            for (n, r) in TAIL_A[k]:
                add(k, 1, lambda n=n, r=r: rd_A(n, r))
        def loopend():
            A(f"s_add_u32 s{sIT}, s{sIT}, 1")
            A(f"s_cmp_lt_u32 s{sIT}, 8")
        add(55, 2, loopend)
        flex = []
        for ks in range(4):
            e, la = 14 * ks, 14 * ks + 13
            if ks < 3: la = min(la, 41)
            if ks == 3: la = 54
            for g in range(2):
                for i in range(4):
                    r = XF(ks, g)[i]
                    a, b = ST[(i % 2) * 2], ST[(i % 2) * 2 + 1]
                    flex.append((e, la, 1, lambda a=a, r=r: p.valu("v_lshlrev_b32", a, 16, r)))
                    flex.append((e, la, 1, lambda b=b, r=r: p.valu("v_and_b32", b, f"s{sHI}", r)))
                    flex.append((e, la, 1, lambda a=a, g=g: p.valu("v_add_f32", SUM[g], SUM[g], a)))
                    flex.append((e, la, 1, lambda a=a, g=g: p.valu("v_fmac_f32", SQ[g], a, a)))
                    flex.append((e, la, 1, lambda b=b, g=g: p.valu("v_add_f32", SUM[g], SUM[g], b)))
                    flex.append((e, la, 1, lambda b=b, g=g: p.valu("v_fmac_f32", SQ[g], b, b)))
        sched(p, mf, pin, flex, budget=6)
    p.directive(".p2align 6")
    p.label("K1_P1_LOOP")
    i0 = len(p.ins)
    p1_body()
    A("s_cbranch_scc1 K1_P1_LOOP")
    i1 = len(p.ins)
    body1 = p.ins[i0:i1]
    save = (len(p.ins))
    p1_body()
    A("s_cbranch_scc1 K1_P1_LOOP")
    body2 = p.ins[save:]
    t1 = [i.text for i in body1]; t2 = [i.text for i in body2]
    assert t1 == t2, "phase1 body not steady: " + str([(a, b) for a, b in zip(t1, t2) if a != b][:5])
    del p.ins[save:]
    chk = p.ins[:i1] + body1

    def kv_unit(kind, c, unit):
        A(f"s_add_u32 m0, s{sW4K}, {unit*UNIT}", wr=['m0'])
        A(f"s_add_u32 s{sT0}, s{sKVB}, {c*16384}")
        for q in range(4):
            if kind == 'K': dma(p, KDMA[q], sK, f"s{sT0}", q * 1024)
            else: dma(p, VDMA, sV, f"s{sT0}", q * 1024)

    e1 = len(p.ins)
    stamp()
    kv_unit('K', 3, KU[3]); kv_unit('V', 2, VU[2]); kv_unit('K', 4, KU[4]); kv_unit('V', 3, VU[3])
    p.wait_lds_all()
    p.valu("v_and_b32", T1, 15, l)
    p.valu("v_lshrrev_b32", T2, 4, l)
    p.valu("v_lshlrev_b32", T1, 6, T1)
    p.valu("v_lshl_add_u32", T1, T2, 4, T1)
    A(f"s_mul_i32 s{sT0}, s{sWAVE}, 896")
    A(f"s_add_u32 s{sT0}, s{sT0}, {CS_PART}")
    p.valu("v_add_u32", T1, f"s{sT0}", T1)
    A("s_mov_b32 exec_lo, 0x00030003")
    A("s_mov_b32 exec_hi, 0x00030003")
    p.nop(3)
    for t in range(7):
        p.lds(f"ds_write_b128 {T1}, {CSA(t)} offset:{t*128}", [T1, CSA(t)], [])
    A("s_mov_b64 exec, -1")
    for g in range(2):
        for Rg in (SUM[g], SQ[g]):
            p.valu("v_mov_b32", T2, Rg)
            p.nop(1)
            p.valu("v_permlane32_swap_b32", T2, Rg, wrx=[Rg], rdx=[T2])
            p.valu("v_add_f32", Rg, Rg, T2)
    for g in range(2):
        p.valu("v_mul_f32", SUM[g], f2u(1.0 / 512), SUM[g])
        p.valu("v_mul_f32", SQ[g], f2u(1.0 / 512), SQ[g])
        p.valu("v_fma_f32", SQ[g], f"-{SUM[g]}", SUM[g], SQ[g], rdx=[SUM[g]])
        p.valu("v_max_f32", SQ[g], 0, SQ[g])
        p.valu("v_add_f32", SQ[g], f2u(1e-5), SQ[g])
        p.valu("v_rsq_f32", RSTD[g], SQ[g])
        p.nop(0)
        p.valu("v_mul_f32", NMR[g], SUM[g], RSTD[g])
        p.valu("v_sub_f32", NMR[g], 0, NMR[g])
    p.wait_lds_all()
    p.raw("s_barrier", "salu")
    p.valu("v_lshlrev_b32", T1, 4, l)
    p.valu("v_add_u32", T2, CS_PART, T1)
    C4 = [V(32 + 4 * i, 4) for i in range(8)]
    for w in range(4):
        p.lds(f"ds_read_b128 {C4[w]}, {T2} offset:{w*896}", [T2], [C4[w]])
    A(f"s_lshl_b32 s{sT0}, s{sWAVE}, 10")
    A(f"s_add_u32 s{sT0}, s{sT0}, {CS_FIN}")
    p.valu("v_add_u32", T1, f"s{sT0}", T1)
    QR = [ST[0], ST[1]]; QN = [ST[2], ST[3]]
    QR2 = [V(56, 2), V(58, 2)]; QN2 = [V(60, 2), V(62, 2)]
    for g in range(2):
        p.valu("v_mul_f32", QR2[g][0], f2u(QSCALE), RSTD[g])
        p.valu("v_mul_f32", QR2[g][1], f2u(QSCALE), RSTD[g])
        p.valu("v_mul_f32", QN2[g][0], f2u(QSCALE), NMR[g])
        p.valu("v_mul_f32", QN2[g][1], f2u(QSCALE), NMR[g])
    for h2 in range(2):
        p.valu("v_pk_add_f32", C4[0].sub(2 * h2, 2), C4[0].sub(2 * h2, 2), C4[1].sub(2 * h2, 2))
        p.valu("v_pk_add_f32", C4[2].sub(2 * h2, 2), C4[2].sub(2 * h2, 2), C4[3].sub(2 * h2, 2))
    for h2 in range(2):
        p.valu("v_pk_add_f32", C4[0].sub(2 * h2, 2), C4[0].sub(2 * h2, 2), C4[2].sub(2 * h2, 2))
    sw = p.lds(f"ds_write_b128 {T1}, {C4[0]}", [T1, C4[0]], [])
    CSRD = T6
    p.valu("v_lshrrev_b32", CSRD, 5, l)
    p.valu("v_lshlrev_b32", CSRD, 4, CSRD)
    p.valu("v_add_u32", CSRD, f"s{sT0}", CSRD)
    p.wait_lds_seq(sw)
    CSR = [V(32 + 4 * i, 4) for i in range(5)]
    TQ = [V(52, 2), V(54, 2)]
    idx = [(t, a) for t in range(4) for a in range(4)]
    def rd_cs(k):
        t, a = idx[k]
        p.lds(f"ds_read_b128 {CSR[k%5]}, {CSRD} offset:{(t*32 + 8*a)*4}", [CSRD], [CSR[k % 5]])
    for k in range(4): rd_cs(k)
    for k, (t, a) in enumerate(idx):
        if k + 4 < 16: rd_cs(k + 4)
        cs = CSR[k % 5]
        for g in range(2):
            acc = QA(g, t)
            for h2 in range(2):
                tq = TQ[h2]
                p.valu("v_pk_mul_f32", tq, cs.sub(2 * h2, 2), QN2[g])
                p.valu("v_pk_fma_f32", tq, acc.sub(4 * a + 2 * h2, 2), QR2[g], tq)
            qf = QF(g, 2 * t + a // 2)
            for h2 in range(2):
                p.valu("v_cvt_pk_bf16_f32", qf[(a % 2) * 2 + h2], TQ[h2][0], TQ[h2][1])
    stamp()
    p.label("K1_P2_ENTRY")
    p.raw("s_waitcnt vmcnt(32)", "wait")
    p.raw("s_barrier", "salu")
    def rd_K(s, kt):
        return p.lds(f"ds_read_b128 {KF(s)}, {KRD[s]} offset:{kt*8192}", [KRD[s]], [KF(s)])
    def rd_V(pi, r, kkbase):
        kk, dt = pi // 4, pi % 4
        d = VF(pi).sub(2 * r, 2)
        return p.lds(f"ds_read_b64_tr_b16 {d}, {VRD[dt]} offset:{(kkbase+kk)*4096 + r*2048}", [VRD[dt]], [d])
    def qk_mfmas(b, first=False):
        mf = []
        for g in range(2):
            for s in range(8):
                c = (0 if first else NEGM(g)) if s == 0 else S(b, g)
                mf.append(lambda g=g, s=s, c=c: p.mfma(S(b, g), KF(s), QF(g, s), c))
        return mf
    def pv_mfmas(b):
        mf = []
        for pi in range(8):
            kk, dt = pi // 4, pi % 4
            for g in range(2):
                mf.append(lambda g=g, pi=pi, kk=kk, dt=dt: p.mfma(OA(g, dt), VF(pi), P(b, g, kk), OA(g, dt)))
        return mf
    def softmax_items(b, e0, e1_, l0, sub=False):
        it = []
        for g in range(2):
            e = e0 if g == 0 else e1_
            s_ = S(b, g)
            for r in range(0, 16, 2):
                if sub:
                    it.append((e, l0, 1, lambda r=r, s_=s_, g=g: p.valu("v_add_f32", s_[r], s_[r], NEGM(g)[0])))
                    it.append((e, l0, 1, lambda r=r, s_=s_, g=g: p.valu("v_add_f32", s_[r + 1], s_[r + 1], NEGM(g)[0])))
                it.append((e, l0, 2, lambda r=r, s_=s_: p.valu("v_exp_f32", s_[r], s_[r])))
                it.append((e, l0, 2, lambda r=r, s_=s_: p.valu("v_exp_f32", s_[r + 1], s_[r + 1])))
                it.append((e, l0, 1, lambda r=r, s_=s_, g=g: p.valu("v_add_f32", L[g], L[g], s_[r])))
                it.append((e, l0, 1, lambda r=r, s_=s_, g=g: p.valu("v_cvt_pk_bf16_f32", P(b, g, r // 8)[(r % 8) // 2], s_[r], s_[r + 1])))
                it.append((e, l0, 1, lambda r=r, s_=s_, g=g: p.valu("v_add_f32", L[g], L[g], s_[r + 1])))
        return it
    def max_items(g, e, la):
        s_ = S(0, g)
        m = [T1, T2][g]; m2 = [T3, T4][g]
        it = []
        it.append((e, la, 1, lambda: p.valu("v_max3_f32", m, s_[0], s_[1], MINIT[g])))
        for r in range(2, 16, 2):
            it.append((e, la, 1, lambda r=r: p.valu("v_max3_f32", m, s_[r], s_[r + 1], m)))
        it.append((e, la, 1, lambda: p.valu("v_mov_b32", m2, m)))
        it.append((e, la, 2, lambda: p.nop(1)))
        it.append((e, la, 1, lambda: p.valu("v_permlane32_swap_b32", m2, m, wrx=[m], rdx=[m2])))
        it.append((e, la, 1, lambda: p.valu("v_max_f32", m, m, m2)))
        for r in range(16):
            it.append((e, la, 1, lambda r=r: p.valu("v_sub_f32", NEGM(g)[r], 0, m)))
        return it
    kt_ = sum(KU[i] << (4 * i) for i in range(8)); vt_ = sum(VU[i] << (4 * i) for i in range(8))
    A(f"s_mov_b32 s{sKT}, {kt_ >> 4}")
    A(f"s_mov_b32 s{sVT}, {vt_ >> 4}")
    A(f"s_mov_b32 s{sKC}, {KU[0]}")
    A(f"s_mov_b32 s{sVC}, {VU[0]}")
    A(f"s_mov_b32 s{sKD}, {kt_ >> 24}")
    A(f"s_mov_b32 s{sVD}, {vt_ >> 16}")
    A(f"s_add_u32 s{sKSRC}, s{sKVB}, {6*16384}")
    A(f"s_add_u32 s{sVSRC}, s{sKVB}, {4*16384}")
    def kadv_s():
        A(f"s_and_b32 s{sT0}, s{sKT}, 15")
        A(f"s_sub_u32 s{sT1}, s{sT0}, s{sKC}")
        A(f"s_lshl_b32 s{sT1}, s{sT1}, 14")
        A(f"s_mov_b32 s{sKC}, s{sT0}")
        A(f"s_lshr_b32 s{sKT}, s{sKT}, 4")
    def kadv_v():
        for s in range(8): p.valu("v_add_u32", KRD[s], f"s{sT1}", KRD[s])
    def vadv_s():
        A(f"s_and_b32 s{sT2}, s{sVT}, 15")
        A(f"s_sub_u32 s{sT3}, s{sT2}, s{sVC}")
        A(f"s_lshl_b32 s{sT3}, s{sT3}, 14")
        A(f"s_mov_b32 s{sVC}, s{sT2}")
        A(f"s_lshr_b32 s{sVT}, s{sVT}, 4")
    def vadv_v():
        for d in range(4): p.valu("v_add_u32", VRD[d], f"s{sT3}", VRD[d])
    for s in range(8): rd_K(s, 0)
    mf = qk_mfmas(0, first=True) + qk_mfmas(1)
    pin = {}
    def add(k, c, th): pin.setdefault(k, []).append((c, th))
    for s in range(8): add(8 + s, 1, lambda s=s: rd_K(s, 1))
    add(17, 5, kadv_s)
    add(19, 8, kadv_v)
    def bar0():
        p.raw("s_waitcnt vmcnt(24)", "wait")
        p.raw("s_barrier", "salu")
    add(23, 2, bar0)
    for s in range(8): add(24 + s, 1, lambda s=s: rd_K(s, 0))
    flex = []
    for r in range(96, 152): flex.append((min((r - 96) // 5, 9) if r < 146 else 15, 31, 1, lambda r=r: p.valu("v_accvgpr_write_b32", AG(r), 0)))
    flex = flex[:50] + max_items(0, 10, 14) + flex[50:] + max_items(1, 18, 22) + softmax_items(0, 18, 18, 31, sub=True)
    sched(p, mf, pin, flex, budget=6)
    kv_unit('K', 5, KU[5])
    A(f"s_mov_b32 s{sIT}, 1")
    def p2_body():
        st = {}
        for half in range(2):
            b = half
            mf = qk_mfmas(b) + pv_mfmas(b)
            pin = {}
            def add(k, c, th): pin.setdefault(k, []).append((c, th))
            for pi in range(8):
                for r in range(2):
                    def th(pi=pi, r=r):
                        s_ = rd_V(pi, r, 2 * half)
                        if pi == 7 and r == 1: st['lastV'] = s_
                    add(2 * pi + r, 1, th)
            if half == 0:
                for s in range(8): add(20 + s + (s // 2), 1, lambda s=s: rd_K(s, 1))
                def vd():
                    A(f"s_cmp_gt_u32 s{sIT}, 5")
                    A("s_cbranch_scc1 K1_NOVD")
                    A(f"s_cmp_lt_u32 s{sIT}, 2")
                    A("s_cbranch_scc1 K1_NOVD")
                    A(f"s_and_b32 s{sT0}, s{sVD}, 15")
                    A(f"s_lshl_b32 s{sT0}, s{sT0}, 14")
                    A(f"s_add_u32 m0, s{sT0}, s{sW4K}", wr=['m0'])
                    A(f"s_lshr_b32 s{sVD}, s{sVD}, 4")
                    for q in range(4): dma(p, VDMA, sV, f"s{sVSRC}", q * 1024)
                    A(f"s_add_u32 s{sVSRC}, s{sVSRC}, 16384")
                    A(f"s_cmp_gt_u32 s{sIT}, 3")
                    A("s_cbranch_scc1 K1_NOVD")
                    A(f"s_and_b32 s{sT0}, s{sKD}, 15")
                    A(f"s_lshl_b32 s{sT0}, s{sT0}, 14")
                    A(f"s_add_u32 m0, s{sT0}, s{sW4K}", wr=['m0'])
                    A(f"s_lshr_b32 s{sKD}, s{sKD}, 4")
                    for q in range(4): dma(p, KDMA[q], sK, f"s{sKSRC}", q * 1024)
                    A(f"s_add_u32 s{sKSRC}, s{sKSRC}, 16384")
                    p.label("K1_NOVD")
                add(17, 6, vd)
            else:
                add(1, 5, kadv_s)
                add(3, 4, lambda: [p.valu("v_add_u32", KRD[s], f"s{sT1}", KRD[s]) for s in range(4)])
                add(5, 4, lambda: [p.valu("v_add_u32", KRD[s], f"s{sT1}", KRD[s]) for s in range(4, 8)])
                add(7, 5, vadv_s)
                add(16, 4, vadv_v)
                def bar():
                    p.raw("s_waitcnt vmcnt(8)", "wait")
                    A(f"s_cmp_lt_u32 s{sIT}, 5")
                    A("s_cbranch_scc1 K1_VW2")
                    p.raw("s_waitcnt vmcnt(0)", "wait")
                    p.label("K1_VW2")
                    p.wait_lds_seq(st['lastV'])
                    p.raw("s_barrier", "salu")
                add(19, 5, bar)
                for s in range(8): add(20 + s + (s // 2), 1, lambda s=s: rd_K(s, 0))
                def loopend():
                    A(f"s_add_u32 s{sIT}, s{sIT}, 1")
                    A(f"s_cmp_lt_u32 s{sIT}, 8")
                add(31, 2, loopend)
            flex = softmax_items(1 - b, 0, 0, 30)
            sched(p, mf, pin, flex, budget=5)
    p.directive(".p2align 6")
    p.label("K1_P2_LOOP")
    j0 = len(p.ins)
    p2_body(); A("s_cbranch_scc1 K1_P2_LOOP")
    j1 = len(p.ins)
    b1 = p.ins[j0:j1]
    p2_body(); A("s_cbranch_scc1 K1_P2_LOOP")
    b2 = p.ins[j1:]
    t1 = [i.text for i in b1]; t2 = [i.text for i in b2]
    assert t1 == t2, "phase2 body not steady: " + str([(a, b) for a, b in zip(t1, t2) if a != b][:5])
    del p.ins[j1:]
    chk += p.ins[e1:j1] + b1
    e2 = len(p.ins)
    stamp()
    for pi in range(8):
        for r in range(2): rd_V(pi, r, 0)
    sm = softmax_items(1, 0, 0, 15)
    for it in sm[:20]: it[3]()
    mf = pv_mfmas(0) + pv_mfmas(1)
    pin = {}
    for pi in range(8):
        pin[2 * pi + 1] = [(1, lambda pi=pi: rd_V(pi, 0, 2)), (1, lambda pi=pi: rd_V(pi, 1, 2))]
    sched(p, mf, pin, sm[20:], budget=7)
    stamp()
    for g in range(2):
        p.valu("v_mov_b32", T2, L[g])
        p.nop(1)
        p.valu("v_permlane32_swap_b32", T2, L[g], wrx=[L[g]], rdx=[T2])
        p.valu("v_add_f32", L[g], L[g], T2)
    RL = [V(32, 2), V(34, 2)]
    for g in range(2):
        p.valu("v_rcp_f32", RL[g][0], L[g])
        p.valu("v_rcp_f32", RL[g][1], L[g])
    A(f"s_mov_b32 s{sT0}, {f2u(2.0**40)}")
    p.valu("v_cmp_nlt_f32", f"s[{sC0}:{sC1}]", L[0], f"s{sT0}", wrx=[f"s{sC0}"])
    p.valu("v_cmp_nlt_f32", "vcc", L[1], f"s{sT0}")
    OFV = T1
    p.valu("v_lshlrev_b32", OFV, 4, l)
    A(f"s_lshl_b32 s{sT1}, s{sRB}, 3")
    A(f"s_lshl_b32 s{sT2}, s{sWAVE}, 1")
    A(f"s_add_u32 s{sT1}, s{sT1}, s{sT2}")
    A(f"s_lshl_b32 s{sT2}, s{sT1}, 18")
    A(f"s_lshl_b32 s{sT3}, s{sH}, 13")
    A(f"s_add_u32 s{sT2}, s{sT2}, s{sT3}")
    A(f"s_or_b64 vcc, vcc, s[{sC0}:{sC1}]", rd=['vcc'], wr=['vcc'])
    A(f"s_cmp_lg_u64 vcc, 0")
    A(f"s_cselect_b32 s{sD}, 1, 0")
    A(f"s_andn2_b32 s{sD}, s{sD}, s{sREDO}")
    TB = [V(128 + 8 * i, 8) for i in range(4)]
    PB = [V(160 + 4 * i, 4) for i in range(4)]
    k = 0
    for g in range(2):
        for dt in range(4):
            for hh in range(2):
                tb, pb = TB[k % 4], PB[k % 4]
                for e in range(8):
                    p.valu("v_accvgpr_read_b32", tb[e], OA(g, dt)[8 * hh + e])
                for e in range(0, 8, 2):
                    p.valu("v_pk_mul_f32", tb.sub(e, 2), tb.sub(e, 2), RL[g])
                for e in range(0, 8, 2):
                    p.valu("v_cvt_pk_bf16_f32", pb[e // 2], tb[e], tb[e + 1])
                fr = dt * 2 + hh
                if fr % 4 == 0:
                    A(f"s_add_u32 s{sT3}, s{sT2}, {g*262144 + (fr//4)*4096}")
                p.raw(f"buffer_store_dwordx4 {pb}, {OFV}, {sr(sWS,4)}, s{sT3} offen offset:{(fr%4)*1024}", "vmem", [pb, OFV])
                k += 1
    CSRD = T6
    p.valu("v_lshrrev_b32", CSRD, 5, l)
    p.valu("v_lshlrev_b32", CSRD, 4, CSRD)
    A(f"s_lshl_b32 s{sT0}, s{sWAVE}, 10")
    A(f"s_add_u32 s{sT0}, s{sT0}, {CS_FIN}")
    p.valu("v_add_u32", CSRD, f"s{sT0}", CSRD)
    CSG = [V(176 + 4 * i, 4) for i in range(12)]
    for t in range(3):
        for a in range(4):
            p.lds(f"ds_read_b128 {CSG[t*4+a]}, {CSRD} offset:{((4+t)*32 + 8*a)*4}", [CSRD], [CSG[t * 4 + a]])
    GR = [V(36, 2), V(38, 2)]; GN = [V(40, 2), V(42, 2)]; UR = [V(44, 2), V(46, 2)]; UN = [V(48, 2), V(50, 2)]
    ONE2 = V(52, 2)
    for g in range(2):
        for i in range(2):
            p.valu("v_mul_f32", GR[g][i], f2u(-LOG2E), RSTD[g])
            p.valu("v_mul_f32", GN[g][i], f2u(-LOG2E), NMR[g])
            p.valu("v_mov_b32", UR[g][i], RSTD[g])
            p.valu("v_mov_b32", UN[g][i], NMR[g])
    p.valu("v_mov_b32", ONE2[0], 1.0); p.valu("v_mov_b32", ONE2[1], 1.0)
    A(f"s_mul_i32 s{sT2}, s{sT1}, 88064")
    A(f"s_mul_i32 s{sT3}, s{sH}, 3072")
    A(f"s_add_u32 s{sT2}, s{sT2}, s{sT3}")
    A(f"s_add_u32 s{sT2}, s{sT2}, {HF_OFF}")
    A(f"s_mul_i32 s{sT3}, s{sH}, 3")
    GB = [V(128 + 16 * i, 16) for i in range(2)]
    TP = [V(224 + 2 * i, 2) for i in range(8)]
    for t in range(3):
        A(f"s_add_u32 s{sT0}, s{sT3}, {t}")
        A(f"s_cmp_ge_u32 s{sT0}, 86")
        A(f"s_cbranch_scc1 K1_HDONE")
        for g in range(2):
            gb, pb = GB[g], PB[(t * 2 + g) % 4]
            for e in range(16):
                p.valu("v_accvgpr_read_b32", gb[e], GUA(g, t)[e])
            for e in range(0, 16, 2):
                cs = CSG[t * 4 + e // 4].sub(e % 4, 2)
                tp = TP[e // 2]
                p.valu("v_pk_mul_f32", tp, cs, GN[g] if e < 8 else UN[g])
            for e in range(0, 16, 2):
                tp = TP[e // 2]
                p.valu("v_pk_fma_f32", gb.sub(e, 2), gb.sub(e, 2), GR[g] if e < 8 else UR[g], tp)
            for e in range(8): p.valu("v_exp_f32", gb[e], gb[e])
            for e in range(0, 8, 2): p.valu("v_pk_add_f32", gb.sub(e, 2), gb.sub(e, 2), ONE2)
            for e in range(8): p.valu("v_rcp_f32", gb[e], gb[e])
            p.nop(0)
            for e in range(0, 8, 2): p.valu("v_pk_mul_f32", gb.sub(e, 2), gb.sub(e, 2), gb.sub(8 + e, 2))
            for e in range(0, 8, 2): p.valu("v_cvt_pk_bf16_f32", pb[e // 2], gb[e], gb[e + 1])
            A(f"s_add_u32 s{sT0}, s{sT2}, {g*88064}")
            p.raw(f"buffer_store_dwordx4 {pb}, {OFV}, {sr(sWS,4)}, s{sT0} offen offset:{t*1024}", "vmem", [pb, OFV])
    p.label("K1_HDONE")
    p.wait_lds_all()
    PZ = V(176, 4)
    for i in range(4): p.valu("v_mov_b32", PZ[i], -1)
    A(f"s_mul_i32 s{sT0}, s2, 24576")
    A(f"s_mul_i32 s{sT1}, s{sWAVE}, 6144")
    A(f"s_add_u32 s{sT0}, s{sT0}, s{sT1}")
    A(f"s_add_u32 s{sT0}, s{sT0}, {EX_OFF}")
    A(f"s_add_u32 s{sT1}, s{sT0}, 3072")
    for i in range(6):
        p.raw(f"buffer_store_dwordx4 {PZ}, {OFV}, {sr(sWS,4)}, s{sT0 if i < 3 else sT1} offen offset:{(i%3)*1024}", "vmem", [PZ, OFV])
    p.valu("v_mov_b32", T2, f"s{sD}")
    A(f"s_lshl_b32 s{sT0}, s{sWAVE}, 2")
    A(f"s_add_u32 s{sT0}, s{sT0}, {FLAG}")
    p.valu("v_mov_b32", T3, f"s{sT0}")
    p.lds(f"ds_write_b32 {T3}, {T2}", [T3, T2], [])
    p.wait_lds_all()
    p.raw("s_barrier", "salu")
    p.valu("v_mov_b32", T3, FLAG)
    F4 = V(36, 4)
    p.lds(f"ds_read_b128 {F4}, {T3}", [T3], [F4])
    p.valu("v_or3_b32", T2, F4[0], F4[1], F4[2])
    p.valu("v_or_b32", T2, T2, F4[3])
    p.nop(0)
    p.valu("v_readfirstlane_b32", f"s{sT0}", T2)
    p.nop(0)
    A(f"s_cmp_lg_u32 s{sT0}, 0")
    A("s_cbranch_scc1 K1_REDO")
    if debug:
        stamp()
        p.raw("s_waitcnt vmcnt(0)", "wait")
        A("s_memtime s[64:65]")
        A("s_memrealtime s[66:67]")
        A("s_waitcnt lgkmcnt(0)")
        A(f"s_lshl_b32 s{sT0}, s2, 2")
        A(f"s_add_u32 s{sT0}, s{sT0}, s{sWAVE}")
        A(f"s_lshl_b32 s{sT0}, s{sT0}, 6")
        A(f"s_add_u32 s{sT0}, s{sT0}, {31 << 20}")
        p.valu("v_mov_b32", T1, 0)
        vals = [f"s{80+2*i}" for i in range(8)] + ["s64", "s78", "s66"]
        for i, sv in enumerate(vals):
            p.valu("v_mov_b32", T2, sv)
            p.raw(f"buffer_store_dword {T2}, {T1}, {sr(sWS,4)}, s{sT0} offen offset:{4*i}", "vmem", [T2, T1])
    p.label("K1_END")
    A("s_endpgm")
    chk += p.ins[e2:]
    o1 = len(p.ins)
    p.label("K1_P1_SPECIAL")
    A(f"s_cmp_eq_u32 s{sIT}, 6")
    A("s_cbranch_scc0 K1_P1_SP7")
    kv_unit('K', 0, KU[0])
    A("s_branch K1_P1_SPECIAL_RET")
    p.label("K1_P1_SP7")
    kv_unit('K', 1, KU[1]); kv_unit('V', 0, VU[0]); kv_unit('K', 2, KU[2]); kv_unit('V', 1, VU[1])
    A("s_branch K1_P1_SPECIAL_RET")
    p.label("K1_REDO")
    p.raw("s_barrier", "salu")
    A(f"s_mov_b32 s{sREDO}, 1")
    A(f"s_sub_u32 s{sT1}, {KU[0]}, s{sKC}")
    A(f"s_lshl_b32 s{sT1}, s{sT1}, 14")
    A(f"s_sub_u32 s{sT3}, {VU[0]}, s{sVC}")
    A(f"s_lshl_b32 s{sT3}, s{sT3}, 14")
    kadv_v(); vadv_v()
    A(f"s_mov_b32 s{sIT}, 0")
    A(f"s_mov_b32 s{sKSRC}, s{sKVB}")
    p.label("K1_RLOOP")
    A(f"s_add_u32 m0, s{sW4K}, {KU[0]*UNIT}", wr=['m0'])
    p.nop(0)
    for q in range(4): dma(p, KDMA[q], sK, f"s{sKSRC}", q * 1024)
    A(f"s_add_u32 s{sKSRC}, s{sKSRC}, 16384")
    p.raw("s_waitcnt vmcnt(0)", "wait")
    p.raw("s_barrier", "salu")
    for kt in range(2):
        for s in range(8): rd_K(s, kt)
        for th in qk_mfmas(0, first=True): th()
        p.nop(15)
        for g in range(2):
            for r in range(0, 16, 2):
                p.valu("v_max3_f32", MINIT[g], S(0, g)[r], S(0, g)[r + 1], MINIT[g])
    p.raw("s_barrier", "salu")
    A(f"s_add_u32 s{sIT}, s{sIT}, 1")
    A(f"s_cmp_lt_u32 s{sIT}, 8")
    A("s_cbranch_scc1 K1_RLOOP")
    kv_unit('K', 0, KU[0])
    kv_unit('K', 1, KU[1]); kv_unit('V', 0, VU[0]); kv_unit('K', 2, KU[2]); kv_unit('V', 1, VU[1])
    kv_unit('K', 3, KU[3]); kv_unit('V', 2, VU[2]); kv_unit('K', 4, KU[4]); kv_unit('V', 3, VU[3])
    for g in range(2): p.valu("v_mov_b32", L[g], 0)
    for r in range(152, 224): p.valu("v_accvgpr_write_b32", AG(r), 0)
    A("s_branch K1_P2_ENTRY")
    probs = check_hazards(chk, "k1") + check_hazards(p.ins[o1:], "k1-ool")
    for x in probs: print("HAZARD", x)
    assert not probs
    return p.text()

if __name__ == "__main__":
    t = gen_k1()
    print(len(t.split("\n")), "lines")
```

```python
from fw import *
from k1 import OF_OFF, HF_OFF, EX_OFF, WS_BYTES, LOG2E, f2u, sched, dma

NVGPR = 160
ACCUM = 160
SLOT = 32768
NSLOT = 5

LANE = V(0)
T1, T2, T3, T4, T5, T6 = [V(i) for i in range(1, 7)]
WRD = [V(8 + i) for i in range(4)]
BRD = V(12)
WDMA = [V(13 + i) for i in range(4)]
L16 = V(17)
XOFF = V(18)
XR = V(20, 8)
def AF(n): return V(32 + (n % 8) * 4, 4)
def BF(ks): return V(64 + ks * 4, 4)
def ACC(t): return V(80 + t * 16, 16)
OWN = V(144, 16)

sB, sW, sX, sO, sWS = 8, 12, 16, 20, 24
sWAVE, sS, sCB, sRB, sTG, sN, sIT = 28, 29, 30, 31, 32, 33, 34
sWOFF, sBOFF, sDST, sCUR, sD, sW4K = 35, 36, 37, 38, 39, 40
sT0, sT1, sT2, sT3 = 41, 42, 43, 44
sEX = 45
sNEG = 46


def gen_k2(debug=False):
    p = Prog()
    A = p.salu
    l = LANE
    nst = [0]
    def stamp():
        if not debug: return
        i = nst[0]; nst[0] += 1
        p.wait_lds_all()
        A(f"s_memtime s[{80+2*i}:{81+2*i}]")
        A("s_waitcnt lgkmcnt(0)")
    A("s_cmp_ge_u32 s2, 256")
    A("s_cbranch_scc1 K2_END")
    stamp()
    if debug: A("s_memrealtime s[78:79]")
    A("s_load_dwordx2 s[64:65], s[0:1], 0")
    A("s_load_dwordx2 s[66:67], s[0:1], 32")
    A("s_load_dwordx4 s[68:71], s[0:1], 64")
    A("s_load_dwordx2 s[72:73], s[0:1], 88")
    p.valu("v_lshrrev_b32", T1, 6, l)
    p.valu("v_and_b32", l, 63, l)
    A(f"s_and_b32 s{sS}, s2, 3")
    A("s_bfe_u32 s3, s2, 0x10002")
    p.valu("v_readfirstlane_b32", f"s{sWAVE}", T1)
    A("s_lshr_b32 s4, s2, 3")
    A(f"s_and_b32 s{sCB}, s4, 3")
    A("s_lshr_b32 s4, s4, 2")
    A("s_lshl_b32 s3, s3, 3")
    A(f"s_add_u32 s{sRB}, s3, s4")
    A(f"s_lshl_b32 s{sTG}, s{sRB}, 2")
    A(f"s_add_u32 s{sTG}, s{sTG}, s{sWAVE}")
    A(f"s_lshl_b32 s{sW4K}, s{sWAVE}, 12")
    p.valu("v_lshlrev_b32", L16, 4, l)
    p.valu("v_lshrrev_b32", T2, 4, l)
    p.valu("v_and_b32", T3, 15, l)
    p.valu("v_lshlrev_b32", T4, 2, T2)
    p.valu("v_xor_b32", T4, T4, T3)
    p.valu("v_lshlrev_b32", T4, 4, T4)
    p.valu("v_lshl_add_u32", T4, T2, 10, T4)
    for j in range(4):
        p.valu("v_add_u32", WDMA[j], 3 * j * 1024, T4)
    A(f"s_mul_i32 s{sT0}, s{sS}, 84")
    A(f"s_add_u32 s{sT0}, s{sT0}, 4")
    A(f"s_cmp_eq_u32 s{sS}, 0")
    A(f"s_cselect_b32 s{sT0}, 0, s{sT0}")
    A(f"s_cselect_b32 s{sT1}, 44, 42")
    A(f"s_lshl_b32 s{sT1}, s{sT1}, 1")
    A(f"s_cmp_eq_u32 s{sS}, 0")
    A(f"s_cselect_b32 s{sN}, 22, 21")
    A(f"s_cmp_eq_u32 s{sS}, 3")
    A(f"s_cselect_b32 s{sT0}, 0, s{sT0}")
    A(f"s_cselect_b32 s{sT1}, 86, s{sT1}")
    A(f"s_cselect_b32 s{sN}, 22, s{sN}")
    A(f"s_lshl_b32 s{sT2}, s{sTG}, 18")
    A(f"s_lshl_b32 s{sT3}, s{sT0}, 10")
    A(f"s_add_u32 s{sT2}, s{sT2}, s{sT3}")
    A(f"s_mul_i32 s{sT3}, s{sTG}, 88064")
    A(f"s_add_u32 s{sT3}, s{sT3}, {HF_OFF}")
    A(f"s_cmp_eq_u32 s{sS}, 3")
    A(f"s_cselect_b32 s{sT2}, s{sT3}, s{sT2}")
    A("s_waitcnt lgkmcnt(0)")
    A(f"s_cselect_b32 s{sW}, s68, s66")
    A(f"s_cselect_b32 s{sW+1}, s69, s67")
    A(f"s_add_u32 s{sB}, s72, s{sT2}")
    A(f"s_addc_u32 s{sB+1}, s73, 0")
    A(f"s_lshl_b32 s{sB+2}, s{sT1}, 10")
    A(f"s_mov_b32 s{sB+3}, 0x00020000")
    A(f"s_add_u32 s{sT1}, s{sT1}, s{sT0}")
    A(f"s_lshl_b32 s{sW+2}, s{sT1}, 14")
    A(f"s_mov_b32 s{sW+3}, 0x00020000")
    A(f"s_lshl_b32 s{sWOFF}, s{sT0}, 14")
    A(f"s_lshl_b32 s{sT1}, s{sWAVE}, 14")
    A(f"s_add_u32 s{sWOFF}, s{sWOFF}, s{sT1}")
    A(f"s_lshl_b32 s{sT1}, s{sCB}, 8")
    A(f"s_add_u32 s{sWOFF}, s{sWOFF}, s{sT1}")
    A(f"s_mov_b32 s{sBOFF}, 0")
    A(f"s_mov_b32 s{sDST}, s{sW4K}")

    def dma_items():
        it = []
        it.append(lambda: A(f"s_mov_b32 m0, s{sDST}", wr=['m0']))
        for j in range(4): it.append(lambda j=j: dma(p, WDMA[j], sW, f"s{sWOFF}", j * 1024))
        it.append(lambda: A(f"s_add_u32 m0, s{sDST}, 16384", wr=['m0']))
        for j in range(4): it.append(lambda j=j: dma(p, L16, sB, f"s{sBOFF}", j * 1024))
        return it
    def dma_adv():
        A(f"s_add_u32 s{sWOFF}, s{sWOFF}, 65536")
        A(f"s_add_u32 s{sBOFF}, s{sBOFF}, 4096")
        A(f"s_add_u32 s{sDST}, s{sDST}, {SLOT}")
        A(f"s_cmp_ge_u32 s{sDST}, {NSLOT*SLOT}")
        A(f"s_cselect_b32 s{sT0}, {NSLOT*SLOT}, 0")
        A(f"s_sub_u32 s{sDST}, s{sDST}, s{sT0}")
    for st in range(4):
        it = dma_items()
        for k, th in enumerate(it):
            th()
            if k in (0, 5): p.nop(0)
        dma_adv()
    def srd(d, lo, nbytes):
        A(f"s_mov_b32 s{d}, s{lo}")
        A(f"s_mov_b32 s{d+1}, s{lo+1}")
        A(f"s_mov_b32 s{d+2}, {nbytes}")
        A(f"s_mov_b32 s{d+3}, 0x00020000")
    srd(sX, 64, 2048 * 1024)
    srd(sO, 70, 2048 * 1024)
    srd(sWS, 72, WS_BYTES)
    p.valu("v_and_b32", T1, 31, l)
    p.valu("v_lshrrev_b32", T2, 5, l)
    p.valu("v_lshlrev_b32", XOFF, 10, T1)
    p.valu("v_lshl_add_u32", XOFF, T2, 5, XOFF)
    A(f"s_lshl_b32 s{sT0}, s{sTG}, 15")
    A(f"s_lshl_b32 s{sT1}, s{sCB}, 8")
    A(f"s_add_u32 s{sT0}, s{sT0}, s{sT1}")
    A(f"s_lshl_b32 s{sT1}, s{sS}, 6")
    A(f"s_add_u32 s{sT0}, s{sT0}, s{sT1}")
    p.valu("v_add_u32", XOFF, f"s{sT0}", XOFF)
    p.valu("v_bfe_u32", T3, l, 2, 2)
    p.valu("v_lshl_add_u32", T6, T2, 2, T3)
    p.valu("v_lshlrev_b32", T6, 8, T6)
    p.valu("v_and_b32", T4, 1, l)
    p.valu("v_lshl_add_u32", T6, T4, 5, T6)
    p.valu("v_bfe_u32", T4, l, 4, 1)
    p.valu("v_lshl_add_u32", T6, T4, 4, T6)
    p.valu("v_bfe_u32", T4, l, 1, 1)
    p.valu("v_lshl_add_u32", T6, T4, 3, T6)
    for t in range(4):
        p.valu("v_xor_b32", WRD[t], t, T3)
        p.valu("v_lshl_add_u32", WRD[t], WRD[t], 6, T6)
    A(f"s_add_u32 s{sT0}, s{sW4K}, 16384")
    p.valu("v_add_u32", BRD, f"s{sT0}", L16)
    for r in range(80, 144): p.valu("v_mov_b32", V(r), 0)
    A(f"s_mov_b32 s{sCUR}, 0")
    A(f"s_mov_b32 s{sIT}, 0")
    A(f"s_mov_b32 s{sNEG}, {(-(NSLOT-1)*SLOT) & 0xffffffff}")
    A(f"s_lshl_b32 s{sEX}, s{sRB}, 2")
    A(f"s_add_u32 s{sEX}, s{sEX}, s{sCB}")
    A(f"s_mul_i32 s{sEX}, s{sEX}, 98304")
    A(f"s_lshl_b32 s{sT0}, s{sWAVE}, 11")
    A(f"s_add_u32 s{sEX}, s{sEX}, s{sT0}")
    A(f"s_add_u32 s{sEX}, s{sEX}, {EX_OFF}")

    def rd_A(n):
        n %= 16
        ks, t = n // 4, n % 4
        for r in range(2):
            d = AF(n).sub(2 * r, 2)
            p.lds(f"ds_read_b64_tr_b16 {d}, {WRD[t]} offset:{ks*4096 + r*2048}", [WRD[t]], [d])
    def rd_B(ks):
        p.lds(f"ds_read_b128 {BF(ks)}, {BRD} offset:{ks*1024}", [BRD], [BF(ks)])
    stamp()
    p.raw("s_waitcnt vmcnt(24)", "wait")
    p.raw("s_barrier", "salu")
    stamp()
    for k in range(10, 16):
        if k == 10: rd_B(0)
        if k == 12: rd_B(1)
        rd_A(k - 10)

    def body():
        mf = []
        for m in range(16):
            ks, t = m // 4, m % 4
            mf.append(lambda m=m, ks=ks, t=t: p.mfma(ACC(t), AF(m), BF(ks), ACC(t)))
        pin = {}
        def add(k, c, th): pin.setdefault(k, []).append((c, th))
        add(0, 1, lambda: rd_B(2))
        add(4, 1, lambda: rd_B(3))
        for n in range(6, 16): add(n - 6, 2, lambda n=n: rd_A(n))
        def ptr():
            A(f"s_add_u32 s{sCUR}, s{sCUR}, 1")
            A(f"s_cmp_eq_u32 s{sCUR}, {NSLOT}")
            A(f"s_cselect_b32 s{sD}, s{sNEG}, {SLOT}")
            A(f"s_cselect_b32 s{sCUR}, 0, s{sCUR}")
        add(2, 4, ptr)
        def upd():
            for t in range(4): p.valu("v_add_u32", WRD[t], f"s{sD}", WRD[t])
            p.valu("v_add_u32", BRD, f"s{sD}", BRD)
        add(9, 5, upd)
        def bar():
            p.raw("s_waitcnt vmcnt(16)", "wait")
            p.raw("s_barrier", "salu")
        add(10, 2, bar)
        add(10, 1, lambda: rd_B(0))
        add(12, 1, lambda: rd_B(1))
        for k in range(10, 16): add(k, 2, lambda k=k: rd_A(k - 10))
        it = dma_items()
        pos = [10, 11, 11, 12, 12, 12, 13, 13, 14, 14]
        for k, th in zip(pos, it): add(k, 1, th)
        add(15, 6, dma_adv)
        def loopend():
            A(f"s_add_u32 s{sIT}, s{sIT}, 1")
            A(f"s_cmp_lt_u32 s{sIT}, s{sN}")
        add(15, 2, loopend)
        sched(p, mf, pin, [], budget=6)
    p.directive(".p2align 6")
    p.label("K2_LOOP")
    i0 = len(p.ins)
    body(); A("s_cbranch_scc1 K2_LOOP")
    i1 = len(p.ins)
    b1 = p.ins[i0:i1]
    body(); A("s_cbranch_scc1 K2_LOOP")
    b2 = p.ins[i1:]
    assert [i.text for i in b1] == [i.text for i in b2], "k2 body not steady"
    del p.ins[i1:]
    chk = p.ins[:i1] + b1
    e = len(p.ins)
    stamp()
    p.wait_lds_all()
    p.raw(f"buffer_load_dwordx4 {XR.sub(0,4)}, {XOFF}, {sr(sX,4)}, 0 offen", "vmem", [XOFF], [XR.sub(0, 4)])
    p.raw(f"buffer_load_dwordx4 {XR.sub(4,4)}, {XOFF}, {sr(sX,4)}, 0 offen offset:16", "vmem", [XOFF], [XR.sub(4, 4)])
    p.nop(7)
    PK = [V(32 + 8 * i, 8) for i in range(4)]
    for t in range(4):
        A(f"s_cmp_eq_u32 s{sS}, {t}")
        A(f"s_cbranch_scc1 K2_OWN{t}")
        for i in range(8):
            p.valu("v_cvt_pk_bf16_f32", PK[t][i], ACC(t)[2 * i], ACC(t)[2 * i + 1])
        for i in range(8):
            p.valu("v_min_u32", PK[t][i], -2, PK[t][i])
        A(f"s_cmp_gt_u32 s{sS}, {t}")
        A(f"s_cselect_b32 s{sT0}, 1, 0")
        A(f"s_sub_u32 s{sT0}, s{sS}, s{sT0}")
        A(f"s_lshl_b32 s{sT0}, s{sT0}, 13")
        A(f"s_add_u32 s{sT0}, s{sT0}, s{sEX}")
        A(f"s_add_u32 s{sT0}, s{sT0}, {t*24576}")
        for i in range(2):
            p.raw(f"buffer_store_dwordx4 {PK[t].sub(4*i,4)}, {L16}, {sr(sWS,4)}, s{sT0} offen offset:{i*1024} sc1", "vmem", [PK[t].sub(4 * i, 4), L16])
        A(f"s_branch K2_NEXT{t}")
        p.label(f"K2_OWN{t}")
        for i in range(16): p.valu("v_mov_b32", OWN[i], ACC(t)[i])
        p.label(f"K2_NEXT{t}")
    stamp()
    IN = [V(80 + 8 * i, 8) for i in range(3)]
    A(f"s_mul_i32 s{sT0}, s{sS}, 24576")
    A(f"s_add_u32 s{sT0}, s{sT0}, s{sEX}")
    A(f"s_add_u32 s{sT1}, s{sT0}, 8192")
    A(f"s_add_u32 s{sT2}, s{sT0}, 16384")
    p.label("K2_POLL")
    for sl in range(3):
        for i in range(2):
            d = IN[sl].sub(4 * i, 4)
            p.raw(f"buffer_load_dwordx4 {d}, {L16}, {sr(sWS,4)}, s{sT0+sl} offen offset:{i*1024} sc1", "vmem", [L16], [d])
    p.raw("s_waitcnt vmcnt(0)", "wait")
    allr = [IN[sl][i] for sl in range(3) for i in range(8)]
    p.valu("v_max_u32", T1, allr[0], allr[1])
    for i in range(2, 24, 2):
        p.valu("v_max3_u32", T1, allr[i], allr[i + 1], T1)
    p.valu("v_cmp_eq_u32", "vcc", -1, T1)
    p.nop(1)
    A("s_cbranch_vccnz K2_POLL")
    stamp()
    U = [V(32 + 16 * i, 16) for i in range(3)]
    A(f"s_mov_b32 s{sT0}, 0xffff0000")
    for sl in range(3):
        for i in range(8):
            p.valu("v_lshlrev_b32", U[sl][2 * i], 16, IN[sl][i])
            p.valu("v_and_b32", U[sl][2 * i + 1], f"s{sT0}", IN[sl][i])
    SS = V(80, 16)
    for i in range(0, 16, 2):
        p.valu("v_pk_add_f32", SS.sub(i, 2), U[0].sub(i, 2), U[1].sub(i, 2))
    A(f"s_cmp_eq_u32 s{sS}, 3")
    A("s_cbranch_scc1 K2_F3")
    for i in range(0, 16, 2):
        p.valu("v_pk_add_f32", SS.sub(i, 2), SS.sub(i, 2), OWN.sub(i, 2))
    for i in range(16): p.valu("v_mov_b32", OWN[i], U[2][i])
    A("s_branch K2_FIN")
    p.label("K2_F3")
    for i in range(0, 16, 2):
        p.valu("v_pk_add_f32", SS.sub(i, 2), SS.sub(i, 2), U[2].sub(i, 2))
    p.label("K2_FIN")
    E = V(32, 16); XU = V(48, 16); OP = V(64, 8)
    for i in range(16): p.valu("v_mul_f32", E[i], f2u(-LOG2E), OWN[i])
    for i in range(16): p.valu("v_exp_f32", E[i], E[i])
    for i in range(0, 16, 2): p.valu("v_pk_mul_f32", SS.sub(i, 2), SS.sub(i, 2), OWN.sub(i, 2))
    for i in range(16): p.valu("v_add_f32", E[i], 1.0, E[i])
    for i in range(16): p.valu("v_rcp_f32", E[i], E[i])
    for i in range(8):
        p.valu("v_lshlrev_b32", XU[2 * i], 16, XR[i])
        p.valu("v_and_b32", XU[2 * i + 1], f"s{sT0}", XR[i])
    for i in range(0, 16, 2): p.valu("v_pk_fma_f32", XU.sub(i, 2), SS.sub(i, 2), E.sub(i, 2), XU.sub(i, 2))
    for i in range(8): p.valu("v_cvt_pk_bf16_f32", OP[i], XU[2 * i], XU[2 * i + 1])
    p.raw(f"buffer_store_dwordx4 {OP.sub(0,4)}, {XOFF}, {sr(sO,4)}, 0 offen", "vmem", [OP.sub(0, 4), XOFF])
    p.raw(f"buffer_store_dwordx4 {OP.sub(4,4)}, {XOFF}, {sr(sO,4)}, 0 offen offset:16", "vmem", [OP.sub(4, 4), XOFF])
    if debug:
        stamp()
        p.raw("s_waitcnt vmcnt(0)", "wait")
        A("s_memtime s[64:65]")
        A("s_memrealtime s[66:67]")
        A("s_waitcnt lgkmcnt(0)")
        A(f"s_lshl_b32 s{sT0}, s2, 2")
        A(f"s_add_u32 s{sT0}, s{sT0}, s{sWAVE}")
        A(f"s_lshl_b32 s{sT0}, s{sT0}, 6")
        A(f"s_add_u32 s{sT0}, s{sT0}, {(31 << 20) + 65536}")
        p.valu("v_mov_b32", T1, 0)
        vals = [f"s{80+2*i}" for i in range(7)] + ["s64", "s64", "s78", "s66"]
        for i, sv in enumerate(vals):
            p.valu("v_mov_b32", T2, sv)
            p.raw(f"buffer_store_dword {T2}, {T1}, {sr(sWS,4)}, s{sT0} offen offset:{4*i}", "vmem", [T2, T1])
    p.label("K2_END")
    A("s_endpgm")
    chk += p.ins[e:]
    probs = check_hazards(chk, "k2")
    for x in probs: print("HAZARD", x)
    assert not probs
    return p.text()

if __name__ == "__main__":
    print(len(gen_k2().split("\n")), "lines")
```

```python
import sys
from fw import *
import k1
def build_text(which="all", debug=False):
    launches = []; kernels = []
    launches.append(("k1_kernel", 256, 256, 163840))
    kernels.append(kernel_text("k1_kernel", k1.gen_k1(debug), 512, 102, 256))
    if which == "all":
        import k2
        launches.append(("k2_kernel", 256, 256, 163840))
        kernels.append(kernel_text("k2_kernel", k2.gen_k2(debug), k2.NVGPR, 102, k2.ACCUM))
    return file_text(launches, kernels)
if __name__ == "__main__":
    which = sys.argv[1]; out = sys.argv[2]
    open(out, "w").write(build_text(which, len(sys.argv) > 3))
```
